```python
import torch

def _softmax(x, axis=-1):
    return torch.softmax(x, dim=axis)
def _gelu(x):
    return torch.nn.functional.gelu(x, approximate="tanh")
def _silu(x):
    return torch.nn.functional.silu(x)
def _sigmoid(x):
    return torch.sigmoid(x)
def _layernorm(x, axis=-1, eps=1e-5):
    m = x.mean(dim=axis, keepdim=True)
    v = x.var(dim=axis, keepdim=True, unbiased=False)
    return (x - m) / torch.sqrt(v + eps)
def _scatter_add(tgt, idx, src, axis=0):
    return tgt.clone().index_add_(axis, idx, src)
def _segment_sum(src, seg, n):
    out = torch.zeros((n,) + src.shape[1:], dtype=src.dtype)
    return out.index_add_(0, seg, src)
def _pad(x, pw):
    flat = tuple(v for pair in reversed(pw) for v in pair)
    return torch.nn.functional.pad(x, flat)

kernel_name = 'recurrent_scan__gqa_block_cached__swiglu_ffn__decode'

def setup_inputs():

    _w = (lambda a: (lambda t: t.to(torch.bfloat16) if t.is_floating_point() else t)(torch.as_tensor(a)))
    def _A_setup():
        B, Sq, D = 8, 1, 448
        Hq, Hkv, Sk, Dh = 16, 8, 4096, 256
        assert Hq % Hkv == 0, (Hq, Hkv)
        return {
            "x": _w((lambda *s: torch.randn(*s, dtype=torch.bfloat16) * 0.05)(B, Sq, D)),
            "k_cache": _w((lambda *s: torch.randn(*s, dtype=torch.bfloat16) * 1.6)(B, Hkv, Sk, Dh)),
            "v_cache": _w((lambda *s: torch.randn(*s, dtype=torch.bfloat16) * 0.2)(B, Hkv, Sk, Dh)),
            "wq": _w((lambda *s: torch.randn(*s, dtype=torch.bfloat16) * 1.6)(D, Hq * Dh) * (D ** -0.5)),
            "wo": _w((lambda *s: torch.randn(*s, dtype=torch.bfloat16) * 0.2)(Hq * Dh, D) * ((Hq * Dh) ** -0.5)),
        }
    _A_in = _A_setup()

    def _B_setup():
        B, S, D, F = 8, 1, 448, 1792
        return {
            "x": _w((lambda *s: torch.randn(*s, dtype=torch.bfloat16) * 0.05)(B, S, D)),
            "w_gate": _w((lambda *s: torch.randn(*s, dtype=torch.bfloat16) * 0.1)(D, F)),
            "w_up": _w((lambda *s: torch.randn(*s, dtype=torch.bfloat16) * 0.1)(D, F)),
            "w_down": _w((lambda *s: torch.randn(*s, dtype=torch.bfloat16) * 0.1)(F, D)),
        }
    _B_in = _B_setup()

    return {
        "A_x": _A_in["x"],
        "A_k_cache": _A_in["k_cache"],
        "A_v_cache": _A_in["v_cache"],
        "A_wq": _A_in["wq"],
        "A_wo": _A_in["wo"],
        "B_x": _B_in["x"],
        "B_w_gate": _B_in["w_gate"],
        "B_w_up": _B_in["w_up"],
        "B_w_down": _B_in["w_down"],
    }

def reference(A_x, A_k_cache, A_v_cache, A_wq, A_wo, B_x, B_w_gate, B_w_up, B_w_down):
    def _A_ref(x, k_cache, v_cache, wq, wo):
        B, Sq, D = x.shape
        Hq, Dh = 16, 256
        Hkv = k_cache.shape[1]
        rep = Hq // Hkv
        q = (lambda x, *d: x.permute(*d))((x @ wq).reshape(B, Sq, Hq, Dh), 0, 2, 1, 3)
        k = (lambda x, n, axis: torch.repeat_interleave(x, n, dim=axis))(k_cache, rep, axis=1)
        v = (lambda x, n, axis: torch.repeat_interleave(x, n, dim=axis))(v_cache, rep, axis=1)
        scores = torch.einsum("bhqd,bhkd->bhqk", q, k) * (Dh ** -0.5)
        p = _softmax(scores, axis=-1)
        o = torch.einsum("bhqk,bhkd->bhqd", p, v)
        return (lambda x, *d: x.permute(*d))(o, 0, 2, 1, 3).reshape(B, Sq, Hq * Dh) @ wo

    def _B_ref(x, w_gate, w_up, w_down):
        g = _silu(x @ w_gate)
        u = x @ w_up
        return (g * u) @ w_down

    x = A_x
    xn = _layernorm(x, axis=-1)
    s = _A_ref(xn, A_k_cache, A_v_cache, A_wq, A_wo)
    g = _silu(_B_ref(xn, B_w_gate, B_w_up, B_w_down))
    return x + s * g
```

```python
import struct, sys

KN = "recurrent_scan__gqa_block_cached__swiglu_ffn__decode_kernel"

def f2u(x):
    return struct.unpack("<I", struct.pack("<f", x))[0]

HEADER = """; Kernarg layout for this problem (96 bytes, ptrs only, base s[0:1]):
"""

WS_EPOCH = 0x0
WS_Q = 0x1000
WS_H = 0x30000
WS_Y = 0x40000
WS_A = 0x60000
WS_ML = 0x160000
WS_B = 0x180000
WS_STAMP = 0x800000

RING = 32768
XB = 131072
X_W0 = XB
X_ACT = XB + 14336
X_W1 = XB + 14336
X_Q = XB + 28672
ACT_STRIDE = 912
LDS_TOTAL = 163840
SP_O0 = 7168
SP_O1 = 8192 + 7168
SP_ML = 16384 + 7168
SP_ST = 24576 + 7168

LOG2E = 1.4426950408889634
CPR = LOG2E / 16.0

class Gen:
    def __init__(self, gran=1024, nt=(16, 16, 16, 16), stamps=False, preA=0, preB=2, spin=1 << 18, wo_nt=False, prio=3, b0=True, wnt=False, la=1, hsent=True):
        self.o = []
        self.gran = gran
        self.nt = nt
        self.stamps = stamps
        self.preA = preA
        self.preB = preB
        self.prio = prio
        self.b0 = b0
        self.wnt = wnt
        self.la = la
        self.hsent = hsent
        self.spin = spin
        self.wo_nt = wo_nt
        self.lab = 0

    def a(self, s):
        self.o.append("  " + s)

    def l(self, s):
        self.o.append(s + ":")

    def c(self, s):
        self.o.append("  ; " + s)

    def newlab(self, p):
        self.lab += 1
        return f"L_{p}{self.lab}"

    def nop(self, n):
        while n > 0:
            k = min(n, 8)
            self.a(f"s_nop {k-1}")
            n -= k

    def stamp(self, k):
        if self.stamps:
            self.a(f"s_memrealtime s[{64+2*k}:{65+2*k}]")

    def reduce_g(self, op, v, t):
        a = self.a
        a(f"v_mov_b32 v{t}, v{v}")
        self.nop(2)
        a(f"v_permlane16_swap_b32 v{v}, v{t}")
        self.nop(1)
        a(f"{op} v{v}, v{v}, v{t}")
        a(f"v_mov_b32 v{t}, v{v}")
        self.nop(2)
        a(f"v_permlane32_swap_b32 v{v}, v{t}")
        self.nop(1)
        a(f"{op} v{v}, v{v}, v{t}")

    def reduce32_add(self, v, t):
        a = self.a
        for r in (8, 4, 2, 1):
            self.nop(2)
            a(f"v_add_f32_dpp v{v}, v{v}, v{v} row_ror:{r} row_mask:0xf bank_mask:0xf")
        a(f"v_mov_b32 v{t}, v{v}")
        self.nop(2)
        a(f"v_permlane16_swap_b32 v{v}, v{t}")
        self.nop(1)
        a(f"v_add_f32 v{v}, v{v}, v{t}")

    def bf16r(self, dst, src):
        self.a(f"v_cvt_pk_bf16_f32 v{dst}, v{src}, v{src}")
        self.a(f"v_lshlrev_b32 v{dst}, 16, v{dst}")

    def silu(self, dst, x, t):
        a = self.a
        a(f"v_mul_f32 v{t}, {hex(f2u(-LOG2E))}, v{x}")
        a(f"v_exp_f32 v{t}, v{t}")
        self.nop(1)
        a(f"v_add_f32 v{t}, 1.0, v{t}")
        a(f"v_rcp_f32 v{t}, v{t}")
        self.nop(1)
        a(f"v_mul_f32 v{dst}, v{x}, v{t}")

    def spin_head(self):
        lab = self.newlab("poll")
        self.a(f"s_mov_b32 s50, {self.spin}")
        self.l(lab)
        return lab

    def spin_tail(self, lab, tagregs, tmp):
        a = self.a
        a(f"v_xor_b32 v{tmp}, s41, v{tagregs[0]}")
        rest = tagregs[1:]
        for r in rest:
            a(f"v_xor_b32 v{tmp+1}, s41, v{r}")
            a(f"v_or_b32 v{tmp}, v{tmp}, v{tmp+1}")
        a(f"v_cmp_ne_u32 vcc, 0, v{tmp}")
        done = self.newlab("got")
        a(f"s_cbranch_vccz {done}")
        a("s_sub_u32 s50, s50, 1")
        a("s_cmp_lg_u32 s50, 0")
        a(f"s_cbranch_scc1 {lab}")
        self.l(done)

    def issue_tile(self, srd, voff, mbase, mofs, srow):
        a = self.a
        for half in range(2):
            o = mofs + half * 4096
            if o == 0:
                a(f"s_mov_b32 m0, s{mbase}")
            else:
                a(f"s_add_u32 m0, s{mbase}, {o}")
            a("s_nop 0")
            for j in range(4):
                jj = half * 4 + j
                a(f"buffer_load_dwordx4 v{voff+jj}, s[{srd}:{srd+3}], s{srow} offen offset:{j*1024} nt lds")

    def issue_wo(self, t, mbase, mofs):
        a = self.a
        a(f"s_add_u32 s47, s46, {t*32*896}")
        fl = " nt" if self.wo_nt else ""
        for i in range(7):
            a(f"s_add_u32 m0, s{mbase}, {mofs + i*1024}")
            a("s_nop 0")
            a(f"buffer_load_dwordx4 v{56+i}, s[36:39], s47 offen{fl} lds")

    def tile_body(self, mode):
        a = self.a
        M, L = 10, 11
        KA, VA = 28, 36
        S, E, P = 44, 48, 52
        Q, KF, VF, ACC = 64, 96, 128, 160
        LA = self.la
        if LA == 2:
            wk, wv = {"main": (24, 24), "pen": (24, 23), "last": (22, 21)}[mode]
        else:
            wk, wv = {"main": (8, 8), "last": (8, 21)}[mode]
        a(f"s_waitcnt vmcnt({wk})")
        if LA == 1:
            a("s_xor_b32 s51, s44, 0x4000")
            if mode == "main":
                self.issue_tile(28, 12, 51, 0, 45)
        for st in range(8):
            a(f"ds_read_b128 v[{KF+4*st}:{KF+4*st+3}], v{KA+st}")
        if LA == 1 and mode == "last":
            self.issue_wo(0, 51, 0)
            self.issue_wo(1, 51, 8192)
        for st in range(8):
            a(f"v_xor_b32 v{KA+st}, 0x4000, v{KA+st}")
        a("s_waitcnt lgkmcnt(0)")
        if LA == 2:
            if mode == "main":
                self.issue_tile(28, 12, 44, 0, 45)
            elif mode == "pen":
                self.issue_wo(0, 44, 0)
            else:
                self.issue_wo(2, 44, 0)
        elif mode == "last":
            self.issue_wo(2, 44, 0)
        for st in range(8):
            cin = "0" if st == 0 else f"v[{S}:{S+3}]"
            a(f"v_mfma_f32_16x16x32_bf16 v[{S}:{S+3}], v[{KF+4*st}:{KF+4*st+3}], v[{Q+4*st}:{Q+4*st+3}], {cin}")
        self.nop(8)
        a(f"v_cvt_pk_bf16_f32 v{E}, v{S}, v{S+1}")
        a(f"v_cvt_pk_bf16_f32 v{E+2}, v{S+2}, v{S+3}")
        a(f"v_and_b32 v{E+1}, 0xffff0000, v{E}")
        a(f"v_lshlrev_b32 v{E}, 16, v{E}")
        a(f"v_and_b32 v{E+3}, 0xffff0000, v{E+2}")
        a(f"v_lshlrev_b32 v{E+2}, 16, v{E+2}")
        a(f"v_max3_f32 v54, v{E}, v{E+1}, v{E+2}")
        a(f"v_max_f32 v54, v54, v{E+3}")
        a(f"v_cmp_gt_f32 vcc, v54, v{M}")
        slow = self.newlab("slow"); back = self.newlab("back")
        a(f"s_cbranch_vccnz {slow}")
        self.l(back)
        for k in range(4):
            a(f"v_sub_f32 v{S+k}, v{E+k}, v{M}")
        for k in range(4):
            a(f"v_mul_f32 v{S+k}, s48, v{S+k}")
        for k in range(4):
            a(f"v_exp_f32 v{S+k}, v{S+k}")
        self.nop(1)
        a(f"v_cvt_pk_bf16_f32 v{P}, v{S}, v{S+1}")
        a(f"v_cvt_pk_bf16_f32 v{P+1}, v{S+2}, v{S+3}")
        a(f"v_add_f32 v{S}, v{S}, v{S+1}")
        a(f"v_add_f32 v{S+2}, v{S+2}, v{S+3}")
        a(f"v_add_f32 v{L}, v{L}, v{S}")
        a(f"v_add_f32 v{L}, v{L}, v{S+2}")
        a(f"s_waitcnt vmcnt({wv})")
        if LA == 1 and mode == "main":
            self.issue_tile(32, 20, 51, 8192, 45)
            a("s_add_u32 s45, s45, 32768")
        for j in range(16):
            a(f"ds_read_b64_tr_b16 v[{VF+2*j}:{VF+2*j+1}], v{VA+(j&7)} offset:{(j>>3)*256}")
        for st in range(8):
            a(f"v_xor_b32 v{VA+st}, 0x4000, v{VA+st}")
        a("s_waitcnt lgkmcnt(0)")
        if LA == 2:
            if mode == "main":
                self.issue_tile(32, 20, 44, 8192, 45)
                a("s_add_u32 s45, s45, 32768")
            elif mode == "pen":
                self.issue_wo(1, 44, 8192)
            else:
                self.issue_wo(3, 44, 8192)
        elif mode == "last":
            self.issue_wo(3, 44, 8192)
        a("s_xor_b32 s44, s44, 0x4000")
        for j in range(16):
            a(f"v_mfma_f32_16x16x16_bf16 v[{ACC+4*j}:{ACC+4*j+3}], v[{VF+2*j}:{VF+2*j+1}], v[{P}:{P+1}], v[{ACC+4*j}:{ACC+4*j+3}]")
        self.tail_code.append((slow, back))

    def slow_path(self, slow, back):
        a = self.a
        M, L, ACC = 10, 11, 160
        self.l(slow)
        self.reduce_g("v_max_f32", 54, 55)
        a(f"v_max_f32 v54, v54, v{M}")
        a(f"v_sub_f32 v55, v{M}, v54")
        a(f"v_mul_f32 v55, s48, v55")
        a(f"v_exp_f32 v55, v55")
        a(f"v_mov_b32 v{M}, v54")
        a(f"v_mul_f32 v{L}, v{L}, v55")
        for k in range(64):
            a(f"v_mul_f32 v{ACC+k}, v{ACC+k}, v55")
        a(f"s_branch {back}")

    def slice_dma(self, srd, voff, stride, ldsbase, ssoff):
        a = self.a
        a(f"s_mov_b32 s47, s{ssoff}")
        for i in range(14):
            a(f"s_mov_b32 m0, {ldsbase + i*1024}")
            a("s_nop 0")
            a(f"buffer_load_dwordx4 v{voff}, s[{srd}:{srd+3}], s47 offen{' nt' if self.wnt else ''} lds")
            if i < 13:
                a(f"s_add_u32 s47, s47, {32*stride}")

    def act_frags(self):
        for st in range(14):
            self.a(f"ds_read_b128 v[{64+4*st}:{64+4*st+3}], v2 offset:{st*64}")

    def slice_gemm(self, ldsbase, D):
        a = self.a
        for st in range(14):
            a(f"ds_read_b64_tr_b16 v[{120+4*st}:{121+4*st}], v3 offset:{ldsbase - XB + st*1024}")
            a(f"ds_read_b64_tr_b16 v[{122+4*st}:{123+4*st}], v3 offset:{ldsbase - XB + st*1024 + 128}")
        a("s_waitcnt lgkmcnt(0)")
        for st in range(14):
            cin = "0" if st == 0 else f"v[{D}:{D+3}]"
            a(f"v_mfma_f32_16x16x32_bf16 v[{D}:{D+3}], v[{120+4*st}:{123+4*st}], v[{64+4*st}:{67+4*st}], {cin}")
        self.nop(8)

    def build(self):
        a, l, c = self.a, self.l, self.c
        self.tail_code = []
        o = self.o
        o.append(HEADER.rstrip("\n"))
        o.append(f"; @launch grid=(256,1,1) block=(320,1,1) lds={LDS_TOTAL}")
        o.append('.amdgcn_target "amdgcn-amd-amdhsa--gfx950"')
        o.append(".text")
        o.append(f".globl {KN}")
        o.append(".p2align 8")
        o.append(f".type {KN},@function")
        l(KN)
        a("s_cmp_ge_u32 s2, 0x100")
        a("s_cbranch_scc1 L_end")
        if self.stamps:
            for k in range(64, 80):
                a(f"s_mov_b32 s{k}, 0")
        self.stamp(0)
        a("s_load_dwordx4 s[4:7], s[0:1], 0")
        a("s_load_dwordx4 s[8:11], s[0:1], 16")
        a("s_load_dwordx2 s[24:25], s[0:1], 88")
        a("s_load_dwordx2 s[12:13], s[0:1], 32")
        a("s_load_dwordx4 s[16:19], s[0:1], 48")
        a("s_load_dwordx4 s[20:23], s[0:1], 64")
        a("v_lshrrev_b32 v1, 6, v0")
        a("v_and_b32 v0, 63, v0")
        a("s_lshr_b32 s26, s2, 5")
        a("v_readfirstlane_b32 s3, v1")
        a("s_lshr_b32 s42, s2, 2")
        a("s_and_b32 s27, s42, 7")
        a("s_and_b32 s40, s2, 3")
        a(f"s_mov_b32 s48, {hex(f2u(CPR))}")
        a("s_waitcnt lgkmcnt(0)")
        a(f"s_load_dword s41, s[24:25], {WS_EPOCH}")
        a("s_cmp_eq_u32 s3, 4")
        a("s_cbranch_scc1 L_service")

        c("x loads: lanes 0..27 / 32..59 -> batches 2w, 2w+1")
        a("v_lshrrev_b32 v1, 5, v0")
        a("v_and_b32 v2, 31, v0")
        a("s_lshl_b32 s43, s3, 1")
        a("v_add_u32 v3, s43, v1")
        a("v_mul_u32_u24 v4, 896, v3")
        a("v_lshl_add_u32 v4, v2, 4, v4")
        for k in range(8):
            a(f"v_mov_b32 v{224+k}, 0")
        a("s_mov_b32 s52, 0x0fffffff")
        a("s_mov_b32 s53, 0x0fffffff")
        a("s_mov_b64 exec, s[52:53]")
        a("global_load_dwordx4 v[224:227], v4, s[4:5]")
        a("global_load_dwordx4 v[228:231], v4, s[4:5] offset:448")
        a("s_mov_b64 exec, -1")
        c("K/V descriptors")
        a("s_lshl_b32 s43, s42, 21")
        a("s_add_u32 s28, s6, s43"); a("s_addc_u32 s29, s7, 0"); a("s_mov_b32 s30, 0x200000"); a("s_mov_b32 s31, 0x20000")
        a("s_add_u32 s32, s8, s43"); a("s_addc_u32 s33, s9, 0"); a("s_mov_b32 s34, 0x200000"); a("s_mov_b32 s35, 0x20000")
        c("DMA source offsets")
        g = self.gran
        a(f"s_mul_i32 s43, s3, {g}")
        a("v_lshlrev_b32 v5, 9, v1")
        a("v_add_u32 v5, s43, v5")
        a("v_xor_b32 v6, v2, v1")
        a("v_lshlrev_b32 v7, 1, v1")
        a("v_xor_b32 v7, v2, v7")
        def goff(j):
            per = g // 1024
            return (j // per) * (4 * g) + (j % per) * 1024
        for j in range(8):
            cj = goff(j) - (j & 3) * 1024
            assert cj >= 0
            a(f"v_xor_b32 v8, {2*j}, v6")
            a(f"v_lshl_add_u32 v{12+j}, v8, 4, v5")
            if cj: a(f"v_add_u32 v{12+j}, {cj}, v{12+j}")
            a(f"v_xor_b32 v8, {((2*j)&7)<<1}, v7")
            a(f"v_lshl_add_u32 v{20+j}, v8, 4, v5")
            if cj: a(f"v_add_u32 v{20+j}, {cj}, v{20+j}")
        c("first row of this split and tile count")
        nt = self.nt
        starts = [sum(nt[:i]) for i in range(4)]
        assert sum(nt) == 64
        if len(set(nt)) == 1:
            a(f"s_mul_i32 s45, s40, {nt[0]*32768}")
            a(f"s_mov_b32 s49, {nt[0]}")
        else:
            a(f"s_mov_b32 s45, {starts[0]*32768}"); a(f"s_mov_b32 s49, {nt[0]}")
            for i in range(1, 4):
                a(f"s_cmp_eq_u32 s40, {i}")
                a(f"s_cselect_b32 s45, {starts[i]*32768}, s45")
                a(f"s_cselect_b32 s49, {nt[i]}, s49")
        a("s_lshl_b32 s44, s3, 15")
        c("prefetch tiles 0 and 1 in four groups K0 V0 K1 V1")
        def group(k):
            if k == 0: self.issue_tile(28, 12, 44, 0, 45)
            if k == 1: self.issue_tile(32, 20, 44, 8192, 45); a("s_add_u32 s45, s45, 32768")
            if k == 2: self.issue_tile(28, 12, 44, 16384, 45)
            if k == 3: self.issue_tile(32, 20, 44, 16384 + 8192, 45); a("s_add_u32 s45, s45, 32768")
        if self.b0:
            a("s_barrier")
        for k in range(self.preA): group(k)
        a(f"s_waitcnt vmcnt({8*self.preA})")
        for k in range(self.preA, self.preA + self.preB): group(k)
        c("layernorm of batches 2w, 2w+1")
        F = 232
        for k in range(8):
            a(f"v_lshlrev_b32 v{F+2*k}, 16, v{224+k}")
            a(f"v_and_b32 v{F+2*k+1}, 0xffff0000, v{224+k}")
        a(f"v_add_f32 v8, v{F}, v{F+1}")
        a(f"v_add_f32 v9, v{F+2}, v{F+3}")
        for k in range(4, 16, 2):
            a(f"v_add_f32 v8, v8, v{F+k}")
            a(f"v_add_f32 v9, v9, v{F+k+1}")
        a("v_add_f32 v8, v8, v9")
        self.reduce32_add(8, 9)
        a(f"v_mul_f32 v8, {hex(f2u(1.0/448))}, v8")
        a("v_mov_b32 v9, 0")
        a("v_mov_b32 v10, 0")
        a("s_mov_b64 exec, s[52:53]")
        for k in range(0, 16, 2):
            a(f"v_sub_f32 v54, v{F+k}, v8")
            a(f"v_sub_f32 v55, v{F+k+1}, v8")
            a(f"v_fmac_f32 v9, v54, v54")
            a(f"v_fmac_f32 v10, v55, v55")
        a("s_mov_b64 exec, -1")
        a("v_add_f32 v9, v9, v10")
        self.reduce32_add(9, 10)
        a(f"v_mul_f32 v9, {hex(f2u(1.0/448))}, v9")
        self.bf16r(9, 9)
        a(f"v_add_f32 v9, {hex(f2u(1e-5))}, v9")
        self.bf16r(9, 9)
        a("v_sqrt_f32 v9, v9")
        self.nop(1)
        self.bf16r(9, 9)
        a("v_rcp_f32 v10, v9")
        self.bf16r(8, 8)
        a("v_fma_f32 v54, -v9, v10, 1.0")
        a("v_fma_f32 v10, v54, v10, v10")
        for k in range(16):
            a(f"v_sub_f32 v{F+k}, v{F+k}, v8")
        for k in range(8):
            a(f"v_cvt_pk_bf16_f32 v{224+k}, v{F+2*k}, v{F+2*k+1}")
        for k in range(8):
            a(f"v_lshlrev_b32 v{F+2*k}, 16, v{224+k}")
            a(f"v_and_b32 v{F+2*k+1}, 0xffff0000, v{224+k}")
        for k in range(16):
            a(f"v_mul_f32 v{F+k}, v{F+k}, v10")
        for k in range(8):
            a(f"v_cvt_pk_bf16_f32 v{224+k}, v{F+2*k}, v{F+2*k+1}")
        a(f"v_mul_u32_u24 v4, {ACT_STRIDE}, v3")
        a("v_lshl_add_u32 v4, v2, 4, v4")
        a(f"v_add_u32 v4, {X_ACT}, v4")
        a("s_mov_b64 exec, s[52:53]")
        a("ds_write_b128 v4, v[224:227]")
        a("ds_write_b128 v4, v[228:231] offset:448")
        a("s_mov_b64 exec, -1")
        a("s_waitcnt lgkmcnt(0)")
        self.stamp(1)
        a("s_barrier")
        for k in range(self.preA + self.preB, 2 * self.la): group(k)
        c("LDS read addresses")
        a("v_lshrrev_b32 v1, 4, v0")
        a("v_and_b32 v2, 15, v0")
        a("s_lshl_b32 s43, s3, 15")
        a("v_lshlrev_b32 v3, 9, v2")
        a("v_add_u32 v3, s43, v3")
        a("v_xor_b32 v5, v1, v2")
        for st in range(8):
            a(f"v_xor_b32 v8, {4*st}, v5")
            a(f"v_lshl_add_u32 v{28+st}, v8, 4, v3")
        a("v_lshrrev_b32 v5, 2, v2")
        a("v_lshl_add_u32 v5, v1, 2, v5")
        a("v_and_b32 v6, 3, v2")
        a("v_lshlrev_b32 v6, 3, v6")
        a("v_lshl_add_u32 v6, v5, 9, v6")
        a("s_add_u32 s43, s43, 8192")
        a("v_add_u32 v6, s43, v6")
        a("v_and_b32 v5, 7, v5")
        for jl in range(8):
            a(f"v_xor_b32 v8, {jl}, v5")
            a(f"v_lshl_add_u32 v{36+jl}, v8, 5, v6")
        c("wo source offsets (7 x 64 chunks = 32 rows x 14 chunks)")
        a("s_mul_i32 s43, s3, 224")
        for i in range(7):
            a(f"v_add_u32 v8, {64*i}, v0")
            a("v_mul_u32_u24 v9, 4682, v8")
            a("v_lshrrev_b32 v9, 16, v9")
            a("v_mul_u32_u24 v5, 14, v9")
            a("v_sub_u32 v8, v8, v5")
            a("v_mul_u32_u24 v9, 896, v9")
            a("v_lshl_add_u32 v9, v8, 4, v9")
            a(f"v_add_u32 v{56+i}, s43, v9")
        a("s_mov_b32 s36, s12"); a("s_mov_b32 s37, s13"); a(f"s_mov_b32 s38, {4096*896}"); a("s_mov_b32 s39, 0x20000")
        a("s_lshl_b32 s46, s27, 2"); a("s_add_u32 s46, s46, s40"); a(f"s_mul_i32 s46, s46, {128*896}")
        for k in range(64):
            a(f"v_mov_b32 v{160+k}, 0")
        a("v_mov_b32 v10, 0xff800000")
        a("v_mov_b32 v11, 0")
        a("v_and_b32 v8, 1, v2")
        a("v_lshlrev_b32 v8, 9, v8")
        a("v_lshl_add_u32 v8, v1, 4, v8")
        a(f"v_add_u32 v8, {X_Q}, v8")
        a("s_waitcnt lgkmcnt(0)")
        a("s_add_u32 s41, s41, 1")
        a("s_barrier")
        self.stamp(2)
        for st in range(8):
            a(f"ds_read_b128 v[{64+4*st}:{67+4*st}], v8 offset:{st*64}")
        a(f"s_sub_u32 s49, s49, {self.la}")
        a("s_waitcnt lgkmcnt(0)")
        l("L_main")
        self.tile_body("main")
        a("s_sub_u32 s49, s49, 1")
        a("s_cmp_lg_u32 s49, 0")
        a("s_cbranch_scc1 L_main")
        if self.la == 2:
            self.tile_body("pen")
        self.tile_body("last")
        self.stamp(3)
        c("wave partials -> LDS")
        self.reduce_g("v_add_f32", 11, 9)
        a("v_and_b32 v2, 15, v0")
        a("v_lshrrev_b32 v1, 4, v0")
        a("s_lshl_b32 s43, s3, 15")
        a("v_lshlrev_b32 v3, 13, v2")
        a("v_lshl_add_u32 v3, v1, 4, v3")
        a(f"s_add_u32 s47, s43, {SP_O0}")
        a("v_add_u32 v3, s47, v3")
        a("v_lshlrev_b32 v4, 3, v2")
        a(f"s_add_u32 s47, s43, {SP_ML}")
        a("v_add_u32 v4, s47, v4")
        a("s_mov_b32 s52, 0x00030003")
        a("s_mov_b32 s53, 0x00030003")
        a("s_mov_b64 exec, s[52:53]")
        for j in range(16):
            a(f"ds_write_b128 v3, v[{160+4*j}:{163+4*j}] offset:{j*64}")
        a("s_mov_b64 exec, 3")
        a("ds_write_b64 v4, v[10:11]")
        a("s_mov_b64 exec, -1")
        a("s_waitcnt lgkmcnt(0)")
        a("s_barrier")
        c("combine the four waves: thread -> q = w>>1, d0 = 128*(w&1) + 2l")
        a("s_lshr_b32 s51, s3, 1")
        a("s_and_b32 s54, s3, 1")
        a("s_lshl_b32 s43, s51, 13")
        a("s_lshl_b32 s47, s54, 9")
        a("s_add_u32 s43, s43, s47")
        a(f"s_add_u32 s43, s43, {SP_O0}")
        a("v_lshlrev_b32 v3, 3, v0")
        a("v_add_u32 v3, s43, v3")
        a("v_add_u32 v4, 0x10000, v3")
        a("s_lshl_b32 s43, s51, 3")
        a(f"s_add_u32 s43, s43, {SP_ML}")
        a("v_mov_b32 v5, s43")
        a("v_add_u32 v6, 0x10000, v5")
        a("ds_read_b64 v[224:225], v5")
        a("ds_read_b64 v[226:227], v5 offset:32768")
        a("ds_read_b64 v[228:229], v6")
        a("ds_read_b64 v[230:231], v6 offset:32768")
        a("ds_read_b64 v[232:233], v3")
        a("ds_read_b64 v[234:235], v3 offset:32768")
        a("ds_read_b64 v[236:237], v4")
        a("ds_read_b64 v[238:239], v4 offset:32768")
        c("addresses for publication")
        a("s_lshl_b32 s43, s2, 12")
        a("s_lshl_b32 s47, s51, 11")
        a("s_add_u32 s43, s43, s47")
        a("s_lshl_b32 s47, s54, 10")
        a("s_add_u32 s43, s43, s47")
        a(f"s_add_u32 s43, s43, {WS_A}")
        a("v_lshlrev_b32 v7, 4, v0")
        a("v_add_u32 v7, s43, v7")
        a("s_waitcnt lgkmcnt(4)")
        a("v_max3_f32 v8, v224, v226, v228")
        a("v_max_f32 v8, v8, v230")
        for k in range(4):
            a(f"v_sub_f32 v{240+k}, v{224+2*k}, v8")
        for k in range(4):
            a(f"v_mul_f32 v{240+k}, s48, v{240+k}")
        for k in range(4):
            a(f"v_exp_f32 v{240+k}, v{240+k}")
        a("s_waitcnt lgkmcnt(0)")
        a("v_mul_f32 v244, v240, v232")
        a("v_mul_f32 v246, v240, v233")
        a("v_mul_f32 v250, v240, v225")
        for k in range(1, 4):
            a(f"v_fmac_f32 v244, v{240+k}, v{232+2*k}")
            a(f"v_fmac_f32 v246, v{240+k}, v{233+2*k}")
            a(f"v_fmac_f32 v250, v{240+k}, v{225+2*k}")
        a("v_mov_b32 v245, s41")
        a("v_mov_b32 v247, s41")
        a("global_store_dwordx4 v7, v[244:247], s[24:25] sc1")
        c("M, l of this q")
        a("s_lshl_b32 s43, s2, 5")
        a("s_lshl_b32 s47, s51, 4")
        a("s_add_u32 s43, s43, s47")
        a(f"s_add_u32 s43, s43, {WS_ML}")
        a("v_mov_b32 v7, s43")
        a("v_mov_b32 v248, v8")
        a("v_mov_b32 v249, s41")
        a("v_mov_b32 v251, s41")
        a("s_cmp_lg_u32 s54, 0")
        skipml = self.newlab("skipml")
        a(f"s_cbranch_scc1 {skipml}")
        a("s_mov_b64 exec, 1")
        a("global_store_dwordx4 v7, v[248:251], s[24:25] sc1")
        a("s_mov_b64 exec, -1")
        l(skipml)
        self.stamp(4)
        c("wo fragments (A operands): k-step t lives in slot order pen.K, pen.V, last.K, last.V")
        a("v_and_b32 v2, 15, v0")
        a("v_lshrrev_b32 v1, 4, v0")
        a("v_lshrrev_b32 v3, 2, v2")
        a("v_lshl_add_u32 v3, v1, 3, v3")
        a("v_mul_u32_u24 v3, 224, v3")
        a("v_and_b32 v4, 3, v2")
        a("v_lshl_add_u32 v3, v4, 3, v3")
        a("s_xor_b32 s43, s44, 0x4000")
        a("v_add_u32 v4, s43, v3")
        a("v_add_u32 v3, s44, v3")
        c("hop A gather addresses")
        a("s_lshr_b32 s51, s40, 1")
        a("s_and_b32 s54, s40, 1")
        a("s_lshl_b32 s43, s42, 14")
        a("s_lshl_b32 s47, s51, 11")
        a("s_add_u32 s43, s43, s47")
        a("s_lshl_b32 s47, s54, 10")
        a("s_add_u32 s43, s43, s47")
        a(f"s_add_u32 s43, s43, {WS_A}")
        a("v_lshlrev_b32 v5, 4, v0")
        a("v_add_u32 v5, s43, v5")
        a("v_add_u32 v6, 0x1000, v5")
        a("v_add_u32 v7, 0x2000, v5")
        a("v_add_u32 v8, 0x3000, v5")
        a("s_lshl_b32 s43, s42, 7")
        a("s_lshl_b32 s47, s51, 4")
        a("s_add_u32 s43, s43, s47")
        a(f"s_add_u32 s43, s43, {WS_ML}")
        a("v_mov_b32 v9, s43")
        a("s_waitcnt vmcnt(2)")
        a("s_and_b32 s43, s3, 1")
        a("s_cmp_eq_u32 s43, 0")
        okw = self.newlab("wook")
        a(f"s_cbranch_scc1 {okw}")
        a("s_waitcnt vmcnt(1)")
        l(okw)
        WF = 64
        for t in range(4):
            base = 3 if t < 2 else 4
            for ct in range(7):
                r = WF + (t * 7 + ct) * 4
                off = (t & 1) * 8192 + ct * 32
                a(f"ds_read_b64_tr_b16 v[{r}:{r+1}], v{base} offset:{off}")
                a(f"ds_read_b64_tr_b16 v[{r+2}:{r+3}], v{base} offset:{off + 896}")
        lab = self.spin_head()
        for k, vr in enumerate((5, 6, 7, 8)):
            a(f"global_load_dwordx4 v[{224+4*k}:{227+4*k}], v{vr}, s[24:25] sc1")
        for k in range(4):
            a(f"global_load_dwordx4 v[{240+4*k}:{243+4*k}], v9, s[24:25] offset:{32*k} sc1")
        a("s_waitcnt vmcnt(0)")
        self.spin_tail(lab, [225 + 2 * k for k in range(16)], 54)
        self.stamp(5)
        a("v_max3_f32 v54, v240, v244, v248")
        a("v_max_f32 v54, v54, v252")
        for k in range(4):
            a(f"v_sub_f32 v{240+4*k}, v{240+4*k}, v54")
        for k in range(4):
            a(f"v_mul_f32 v{240+4*k}, s48, v{240+4*k}")
        for k in range(4):
            a(f"v_exp_f32 v{240+4*k}, v{240+4*k}")
        self.nop(1)
        a("v_mul_f32 v54, v240, v242")
        a("v_mul_f32 v44, v240, v224")
        a("v_mul_f32 v45, v240, v226")
        for k in range(1, 4):
            a(f"v_fmac_f32 v54, v{240+4*k}, v{242+4*k}")
            a(f"v_fmac_f32 v44, v{240+4*k}, v{224+4*k}")
            a(f"v_fmac_f32 v45, v{240+4*k}, v{226+4*k}")
        a("v_rcp_f32 v55, v54")
        self.nop(1)
        a("v_fma_f32 v46, -v54, v55, 1.0")
        a("v_fma_f32 v55, v46, v55, v55")
        a("v_mul_f32 v44, v44, v55")
        a("v_mul_f32 v45, v45, v55")
        a("v_cvt_pk_bf16_f32 v44, v44, v45")
        a("s_lshl_b32 s43, s3, 15")
        a(f"s_add_u32 s43, s43, {SP_ST}")
        a("v_lshl_add_u32 v46, v0, 2, s43")
        a("v_lshl_add_u32 v47, v1, 4, s43")
        a("ds_write_b32 v46, v44")
        a("s_waitcnt lgkmcnt(0)")
        for t in range(4):
            a(f"ds_read_b128 v[{204+4*t}:{207+4*t}], v47 offset:{t*64}")
        c("hop B addresses while waiting")
        a("s_mul_i32 s43, s2, 3584")
        a("s_mul_i32 s47, s3, 896")
        a("s_add_u32 s43, s43, s47")
        a(f"s_add_u32 s43, s43, {WS_B}")
        a("v_lshlrev_b32 v5, 7, v2")
        a("v_lshl_add_u32 v5, v1, 5, v5")
        a("v_add_u32 v5, s43, v5")
        for ct in range(1, 7):
            a(f"v_cmp_eq_u32 s[{78+2*ct+2}:{79+2*ct+2}], {ct}, v2")
        a("s_waitcnt lgkmcnt(0)")
        G = 176
        for t in range(4):
            for ct in range(7):
                r = WF + (t * 7 + ct) * 4
                cin = "0" if t == 0 else f"v[{G+4*ct}:{G+4*ct+3}]"
                a(f"v_mfma_f32_16x16x32_bf16 v[{G+4*ct}:{G+4*ct+3}], v[{r}:{r+3}], v[{204+4*t}:{207+4*t}], {cin}")
        a("v_mov_b32 v225, s41"); a("v_mov_b32 v227, s41"); a("v_mov_b32 v229, s41"); a("v_mov_b32 v231, s41")
        self.nop(6)
        dst = (224, 226, 228, 230)
        for v in range(4):
            a(f"v_mov_b32 v{dst[v]}, v{G+v}")
        for ct in range(1, 7):
            for v in range(4):
                a(f"v_cndmask_b32 v{dst[v]}, v{dst[v]}, v{G+4*ct+v}, s[{78+2*ct+2}:{79+2*ct+2}]")
        a("v_cmp_gt_u32 vcc, 7, v2")
        a("s_and_saveexec_b64 s[52:53], vcc")
        a("global_store_dwordx4 v5, v[224:227], s[24:25] sc1")
        a("global_store_dwordx4 v5, v[228:231], s[24:25] offset:16 sc1")
        a("s_mov_b64 exec, -1")
        self.stamp(6)
        if self.stamps:
            a("s_cmp_lg_u32 s3, 0")
            a("s_cbranch_scc1 L_end")
            self.store_stamps(0)
        a("s_endpgm")
        for slow, back in self.tail_code:
            self.slow_path(slow, back)

        l("L_service")
        if self.prio: a(f"s_setprio {self.prio}")
        c("wq slice: columns 16*cs .. +16, cs = (wg&7)*32 + (wg>>3)")
        a("s_and_b32 s43, s2, 7"); a("s_lshl_b32 s43, s43, 5"); a("s_lshr_b32 s47, s2, 3"); a("s_add_u32 s55, s43, s47")
        a("s_mov_b32 s28, s10"); a("s_mov_b32 s29, s11"); a(f"s_mov_b32 s30, {448*8192}"); a("s_mov_b32 s31, 0x20000")
        a("v_lshrrev_b32 v1, 1, v0"); a("v_and_b32 v4, 1, v0"); a("v_lshlrev_b32 v4, 4, v4")
        a("v_lshl_add_u32 v5, v1, 13, v4")
        a("s_lshl_b32 s56, s55, 5")
        self.slice_dma(28, 5, 8192, X_W0, 56)
        if self.b0:
            a("s_barrier")
        c("addresses")
        a("v_mul_u32_u24 v6, 3584, v1"); a("v_add_u32 v6, v6, v4")
        a("v_mul_u32_u24 v7, 896, v1"); a("v_add_u32 v7, v7, v4")
        a("v_lshrrev_b32 v1, 4, v0")
        a("v_and_b32 v4, 15, v0")
        a("v_and_b32 v8, 7, v0")
        a(f"v_mul_u32_u24 v2, {ACT_STRIDE}, v8")
        a("v_lshl_add_u32 v2, v1, 4, v2")
        a(f"v_add_u32 v2, {X_ACT}, v2")
        a("v_lshrrev_b32 v3, 2, v4")
        a("v_lshl_add_u32 v3, v1, 3, v3")
        a("v_lshlrev_b32 v3, 5, v3")
        a("v_and_b32 v9, 3, v4")
        a("v_lshl_add_u32 v3, v9, 3, v3")
        a(f"v_add_u32 v3, {XB}, v3")
        c("q publication address: WS_Q + (b*2048 + 8*cs + 2g)*8")
        a("v_lshlrev_b32 v9, 14, v8")
        a("v_lshl_add_u32 v9, v1, 4, v9")
        a("s_lshl_b32 s43, s55, 6")
        a(f"s_add_u32 s43, s43, {WS_Q}")
        a("v_add_u32 v9, s43, v9")
        c("q gather address: WS_Q + (b*2048 + h*256)*8 + l*16")
        a("s_lshl_b32 s43, s26, 14"); a("s_lshl_b32 s47, s27, 11"); a("s_add_u32 s43, s43, s47"); a(f"s_add_u32 s43, s43, {WS_Q}")
        a("v_lshl_add_u32 v10, v0, 4, s43")
        a(f"v_lshlrev_b32 v11, 3, v0"); a(f"v_add_u32 v11, {X_Q}, v11")
        a("s_waitcnt lgkmcnt(0)")
        a("s_add_u32 s41, s41, 1")
        a("s_barrier")
        self.stamp(1)
        self.act_frags()
        a("s_waitcnt vmcnt(0)")
        self.slice_gemm(X_W0, 44)
        a("v_cvt_pk_bf16_f32 v48, v44, v45")
        a("v_cvt_pk_bf16_f32 v50, v46, v47")
        a("v_mov_b32 v49, s41"); a("v_mov_b32 v51, s41")
        a("s_mov_b32 s52, 0x00ff00ff"); a("s_mov_b32 s53, 0x00ff00ff")
        a("s_mov_b64 exec, s[52:53]")
        a("global_store_dwordx4 v9, v[48:51], s[24:25] sc1")
        a("s_mov_b64 exec, -1")
        self.stamp(2)
        lab = self.spin_head()
        a("global_load_dwordx4 v[176:179], v10, s[24:25] sc1")
        a("global_load_dwordx4 v[180:183], v10, s[24:25] offset:1024 sc1")
        a("s_waitcnt vmcnt(0)")
        self.spin_tail(lab, [177, 179, 181, 183], 54)
        a("v_mov_b32 v177, v178"); a("v_mov_b32 v181, v182")
        self.nop(1)
        a("ds_write_b64 v11, v[176:177]")
        a("ds_write_b64 v11, v[180:181] offset:512")
        a("s_waitcnt lgkmcnt(0)")
        a("s_barrier")
        self.stamp(3)
        c("FFN job index: split 0 -> e*32 + a ; split 2 (bh < 48) -> 64 + e*24 + a ; bh = 2a + e")
        a("s_lshr_b32 s57, s42, 1")
        a("s_and_b32 s58, s42, 1")
        a("s_cmp_eq_u32 s40, 0")
        a("s_cbranch_scc1 L_job0")
        a("s_cmp_lg_u32 s40, 2")
        a("s_cbranch_scc1 L_nojob")
        a("s_cmp_ge_u32 s42, 48")
        a("s_cbranch_scc1 L_nojob")
        a("s_mul_i32 s58, s58, 24"); a("s_add_u32 s57, s57, s58"); a("s_add_u32 s57, s57, 64")
        a("s_branch L_job")
        l("L_job0")
        a("s_lshl_b32 s58, s58, 5"); a("s_add_u32 s57, s57, s58")
        l("L_job")
        c("FFN stage 1: 16 gate columns and 16 up columns")
        a("s_lshl_b32 s56, s57, 5")
        a("s_mov_b32 s28, s16"); a("s_mov_b32 s29, s17"); a(f"s_mov_b32 s30, {448*3584}"); a("s_mov_b32 s31, 0x20000")
        a("s_mov_b32 s32, s18"); a("s_mov_b32 s33, s19"); a(f"s_mov_b32 s34, {448*3584}"); a("s_mov_b32 s35, 0x20000")
        self.slice_dma(28, 6, 3584, X_W0, 56)
        self.slice_dma(32, 6, 3584, X_W1, 56)
        a("s_waitcnt vmcnt(14)")
        self.slice_gemm(X_W0, 44)
        c("down slice: job -> (col tile = j % 28, kappa = j / 28)")
        a("s_mul_i32 s58, s57, 2341"); a("s_lshr_b32 s58, s58, 16")
        a("s_mul_i32 s59, s58, 28"); a("s_sub_u32 s59, s57, s59")
        a(f"s_mul_i32 s56, s58, {448*896}"); a("s_lshl_b32 s43, s59, 5"); a("s_add_u32 s56, s56, s43")
        a("s_mov_b32 s28, s20"); a("s_mov_b32 s29, s21"); a(f"s_mov_b32 s30, {1792*896}"); a("s_mov_b32 s31, 0x20000")
        self.slice_dma(28, 7, 896, X_W0, 56)
        a("s_waitcnt vmcnt(14)")
        self.slice_gemm(X_W1, 48)
        a("v_cvt_pk_bf16_f32 v52, v44, v45"); a("v_cvt_pk_bf16_f32 v53, v46, v47")
        a("v_lshlrev_b32 v44, 16, v52"); a("v_and_b32 v45, 0xffff0000, v52")
        a("v_lshlrev_b32 v46, 16, v53"); a("v_and_b32 v47, 0xffff0000, v53")
        for k in range(4):
            self.silu(44 + k, 44 + k, 54)
        a("v_cvt_pk_bf16_f32 v52, v44, v45"); a("v_cvt_pk_bf16_f32 v53, v46, v47")
        a("v_lshlrev_b32 v44, 16, v52"); a("v_and_b32 v45, 0xffff0000, v52")
        a("v_lshlrev_b32 v46, 16, v53"); a("v_and_b32 v47, 0xffff0000, v53")
        a("v_cvt_pk_bf16_f32 v52, v48, v49"); a("v_cvt_pk_bf16_f32 v53, v50, v51")
        a("v_lshlrev_b32 v48, 16, v52"); a("v_and_b32 v49, 0xffff0000, v52")
        a("v_lshlrev_b32 v50, 16, v53"); a("v_and_b32 v51, 0xffff0000, v53")
        for k in range(4):
            a(f"v_mul_f32 v{44+k}, v{44+k}, v{48+k}")
        a("v_cvt_pk_bf16_f32 v48, v44, v45"); a("v_cvt_pk_bf16_f32 v50, v46, v47")
        a("v_mov_b32 v49, s41"); a("v_mov_b32 v51, s41")
        c("H address: WS_H + (b*896 + 8*j + 2g)*8")
        a("v_mul_u32_u24 v9, 7168, v8")
        a("v_lshl_add_u32 v9, v1, 4, v9")
        a("s_lshl_b32 s43, s57, 6"); a(f"s_add_u32 s43, s43, {WS_H}")
        a("v_add_u32 v9, s43, v9")
        a("s_mov_b32 s52, 0x00ff00ff"); a("s_mov_b32 s53, 0x00ff00ff")
        a("s_mov_b64 exec, s[52:53]")
        a("global_store_dwordx4 v9, v[48:51], s[24:25] sc1")
        a("s_mov_b64 exec, -1")
        self.stamp(4)
        c("FFN stage 2: gather H[8][448*kappa ..] -> LDS act")
        a("s_mul_i32 s43, s58, 1792"); a(f"s_add_u32 s43, s43, {WS_H}")
        a("v_lshl_add_u32 v12, v0, 4, s43")
        a("v_min_u32 v13, 47, v0")
        a("v_lshl_add_u32 v13, v13, 4, s43")
        a("v_add_u32 v13, 1024, v13")
        if self.hsent:
            c("light sentinel poll first: one granule of each of the 28 producers")
            a("v_min_u32 v14, 27, v0")
            a("v_lshl_add_u32 v14, v14, 6, s43")
            lab = self.spin_head()
            a("global_load_dwordx2 v[176:177], v14, s[24:25] sc1")
            a("s_waitcnt vmcnt(0)")
            self.spin_tail(lab, [177], 54)
        lab = self.spin_head()
        for b in range(8):
            a(f"v_add_u32 v14, {b*7168}, v12")
            a(f"v_add_u32 v15, {b*7168}, v13")
            a(f"global_load_dwordx4 v[{176+8*b}:{179+8*b}], v14, s[24:25] sc1")
            a(f"global_load_dwordx4 v[{180+8*b}:{183+8*b}], v15, s[24:25] sc1")
        a("s_waitcnt vmcnt(0)")
        self.spin_tail(lab, [177 + 2 * k for k in range(32)], 54)
        a(f"v_lshlrev_b32 v14, 3, v0"); a(f"v_add_u32 v14, {X_ACT}, v14")
        a("v_min_u32 v15, 47, v0"); a("v_lshlrev_b32 v15, 3, v15"); a(f"v_add_u32 v15, {X_ACT + 512}, v15")
        for b in range(8):
            a(f"v_mov_b32 v{177+8*b}, v{178+8*b}")
            a(f"v_mov_b32 v{181+8*b}, v{182+8*b}")
        for b in range(8):
            a(f"ds_write_b64 v14, v[{176+8*b}:{177+8*b}] offset:{b*ACT_STRIDE}")
            a(f"ds_write_b64 v15, v[{180+8*b}:{181+8*b}] offset:{b*ACT_STRIDE}")
        a("s_waitcnt lgkmcnt(0)")
        self.act_frags()
        self.slice_gemm(X_W0, 44)
        c("Y address: WS_Y + ((kappa*8 + b)*448 + 16*ct + 4g)*8")
        a("v_mul_u32_u24 v9, 3584, v8")
        a("v_lshl_add_u32 v9, v1, 5, v9")
        a(f"s_mul_i32 s43, s58, {8*3584}"); a("s_lshl_b32 s47, s59, 7"); a("s_add_u32 s43, s43, s47"); a(f"s_add_u32 s43, s43, {WS_Y}")
        a("v_add_u32 v9, s43, v9")
        a("v_mov_b32 v48, v44"); a("v_mov_b32 v49, s41"); a("v_mov_b32 v50, v45"); a("v_mov_b32 v51, s41")
        a("v_mov_b32 v52, v46"); a("v_mov_b32 v53, s41"); a("v_mov_b32 v54, v47"); a("v_mov_b32 v55, s41")
        a("s_mov_b64 exec, s[52:53]")
        a("global_store_dwordx4 v9, v[48:51], s[24:25] sc1")
        a("global_store_dwordx4 v9, v[52:55], s[24:25] offset:16 sc1")
        a("s_mov_b64 exec, -1")
        l("L_nojob")
        self.stamp(5)
        c("gate value g2 for outputs 14*jj + i of batch b")
        a("s_and_b32 s57, s2, 31")
        a("s_mul_i32 s58, s57, 14")
        a("v_min_u32 v4, 13, v4")
        a("v_add_u32 v4, s58, v4")
        a("s_mul_i32 s43, s26, 896")
        a("v_lshl_add_u32 v12, v4, 1, s43")
        a("global_load_ushort v16, v12, s[4:5]")
        a(f"v_mul_u32_u24 v13, {8*3584}, v1")
        a("v_lshl_add_u32 v13, v4, 3, v13")
        a("s_mul_i32 s43, s26, 3584"); a(f"s_add_u32 s43, s43, {WS_Y}")
        a("v_add_u32 v13, s43, v13")
        lab = self.spin_head()
        a("global_load_dwordx2 v[176:177], v13, s[24:25] sc1")
        a("s_waitcnt vmcnt(0)")
        self.spin_tail(lab, [177], 54)
        self.reduce_g("v_add_f32", 176, 55)
        self.bf16r(176, 176)
        self.silu(17, 176, 54)
        self.bf16r(17, 17)
        a("v_lshlrev_b32 v16, 16, v16")
        c("hop B gather addresses: WS_B + ((b*32 + 8g + u)*448 + col)*8")
        a(f"v_mul_u32_u24 v13, {8*3584}, v1")
        a("v_lshl_add_u32 v13, v4, 3, v13")
        a(f"s_mul_i32 s43, s26, {32*3584}"); a(f"s_add_u32 s43, s43, {WS_B}")
        a("v_add_u32 v13, s43, v13")
        a(f"v_add_u32 v14, {2*3584}, v13"); a(f"v_add_u32 v15, {4*3584}, v13"); a(f"v_add_u32 v18, {6*3584}, v13")
        self.stamp(6)
        a("s_barrier")
        lab = self.spin_head()
        for k, vr in enumerate((13, 14, 15, 18)):
            a(f"global_load_dwordx2 v[{176+4*k}:{177+4*k}], v{vr}, s[24:25] sc1")
            a(f"global_load_dwordx2 v[{178+4*k}:{179+4*k}], v{vr}, s[24:25] offset:3584 sc1")
        a("s_waitcnt vmcnt(0)")
        self.spin_tail(lab, [177 + 2 * k for k in range(8)], 54)
        a("v_add_f32 v176, v176, v178"); a("v_add_f32 v180, v180, v182"); a("v_add_f32 v184, v184, v186"); a("v_add_f32 v188, v188, v190")
        a("v_add_f32 v176, v176, v180"); a("v_add_f32 v184, v184, v188"); a("v_add_f32 v176, v176, v184")
        self.reduce_g("v_add_f32", 176, 55)
        self.bf16r(176, 176)
        a("v_mul_f32 v176, v176, v17")
        self.bf16r(176, 176)
        a("v_add_f32 v176, v176, v16")
        a("v_cvt_pk_bf16_f32 v176, v176, v176")
        a("s_mov_b64 exec, 0x3fff")
        a("global_store_short v12, v176, s[22:23]")
        a("s_mov_b64 exec, -1")
        self.stamp(7)
        c("advance the epoch (every workgroup has read it: this result depends on all of them)")
        a("s_cmp_lg_u32 s2, 0")
        noep = self.newlab("noep")
        a(f"s_cbranch_scc1 {noep}")
        a("v_mov_b32 v1, 0"); a("v_mov_b32 v2, s41")
        a("s_mov_b64 exec, 1")
        a(f"global_store_dword v1, v2, s[24:25] offset:{WS_EPOCH} sc1")
        a("s_mov_b64 exec, -1")
        l(noep)
        if self.stamps:
            self.store_stamps(1)
        l("L_end")
        a("s_endpgm")
        o.append('.section .rodata,"a"')
        o.append(".p2align 6")
        o.append(f".amdhsa_kernel {KN}")
        o.append("  .amdhsa_next_free_vgpr 256")
        o.append("  .amdhsa_next_free_sgpr 100")
        o.append("  .amdhsa_accum_offset 256")
        o.append("  .amdhsa_group_segment_fixed_size 0")
        o.append("  .amdhsa_kernarg_size 96")
        o.append("  .amdhsa_user_sgpr_count 2")
        o.append("  .amdhsa_user_sgpr_kernarg_segment_ptr 1")
        o.append("  .amdhsa_system_sgpr_workgroup_id_x 1")
        o.append(".end_amdhsa_kernel")
        return "\n".join(o) + "\n"

    def store_stamps(self, which):
        a = self.a
        a("s_waitcnt lgkmcnt(0)")
        a("s_mov_b64 exec, 1")
        a("s_lshl_b32 s43, s2, 7")
        a(f"s_add_u32 s43, s43, {WS_STAMP + which*64}")
        a("v_mov_b32 v1, s43")
        for k in range(4):
            for j in range(4):
                a(f"v_mov_b32 v{4+j}, s{64+4*k+j}")
            a(f"global_store_dwordx4 v1, v[4:7], s[24:25] offset:{16*k}")
            a("s_nop 1")
        a("s_mov_b64 exec, -1")


if __name__ == "__main__":
    import argparse
    ap = argparse.ArgumentParser()
    ap.add_argument("out")
    ap.add_argument("--gran", type=int, default=1024)
    ap.add_argument("--nt", default="16,16,16,16")
    ap.add_argument("--stamps", action="store_true")
    ap.add_argument("--preA", type=int, default=0)
    ap.add_argument("--preB", type=int, default=2)
    ap.add_argument("--prio", type=int, default=3)
    ap.add_argument("--nob0", action="store_true")
    ap.add_argument("--wnt", action="store_true")
    ap.add_argument("--la", type=int, default=1)
    ap.add_argument("--wont", action="store_true")
    args = ap.parse_args()
    g = Gen(gran=args.gran, nt=tuple(int(x) for x in args.nt.split(",")), stamps=args.stamps, preA=args.preA, preB=args.preB, wo_nt=args.wont, prio=args.prio, b0=not args.nob0, wnt=args.wnt, la=args.la)
    open(args.out, "w").write(g.build())
```
